```python
import torch

def _softmax(x, axis=-1):
    return torch.softmax(x, dim=axis)
def _gelu(x):
    return torch.nn.functional.gelu(x, approximate="tanh")
def _silu(x):
    return torch.nn.functional.silu(x)
def _sigmoid(x):
    return torch.sigmoid(x)
def _layernorm(x, axis=-1, eps=1e-5):
    m = x.mean(dim=axis, keepdim=True)
    v = x.var(dim=axis, keepdim=True, unbiased=False)
    return (x - m) / torch.sqrt(v + eps)
def _scatter_add(tgt, idx, src, axis=0):
    return tgt.clone().index_add_(axis, idx, src)
def _segment_sum(src, seg, n):
    out = torch.zeros((n,) + src.shape[1:], dtype=src.dtype)
    return out.index_add_(0, seg, src)
def _pad(x, pw):
    flat = tuple(v for pair in reversed(pw) for v in pair)
    return torch.nn.functional.pad(x, flat)

kernel_name = 'recurrent_scan__mha_block_cached__swiglu_ffn__decode'

def setup_inputs():

    _w = (lambda a: (lambda t: t.to(torch.bfloat16) if t.is_floating_point() else t)(torch.as_tensor(a)))
    def _A_setup():
        B, Sq, D = 2, 1, 640
        H, Sk, Dh = 32, 16384, 192
        return {
            "x": _w((lambda *s: torch.randn(*s, dtype=torch.bfloat16) * 0.05)(B, Sq, D)),
            "k_cache": _w((lambda *s: torch.randn(*s, dtype=torch.bfloat16) * 1.6)(B, H, Sk, Dh)),
            "v_cache": _w((lambda *s: torch.randn(*s, dtype=torch.bfloat16) * 0.2)(B, H, Sk, Dh)),
            "wq": _w((lambda *s: torch.randn(*s, dtype=torch.bfloat16) * 1.6)(D, H * Dh) * (D ** -0.5)),
            "wo": _w((lambda *s: torch.randn(*s, dtype=torch.bfloat16) * 0.2)(H * Dh, D) * ((H * Dh) ** -0.5)),
        }
    _A_in = _A_setup()

    def _B_setup():
        B, S, D, F = 2, 1, 640, 1536
        return {
            "x": _w((lambda *s: torch.randn(*s, dtype=torch.bfloat16) * 0.05)(B, S, D)),
            "w_gate": _w((lambda *s: torch.randn(*s, dtype=torch.bfloat16) * 0.1)(D, F)),
            "w_up": _w((lambda *s: torch.randn(*s, dtype=torch.bfloat16) * 0.1)(D, F)),
            "w_down": _w((lambda *s: torch.randn(*s, dtype=torch.bfloat16) * 0.1)(F, D)),
        }
    _B_in = _B_setup()

    return {
        "A_x": _A_in["x"],
        "A_k_cache": _A_in["k_cache"],
        "A_v_cache": _A_in["v_cache"],
        "A_wq": _A_in["wq"],
        "A_wo": _A_in["wo"],
        "B_x": _B_in["x"],
        "B_w_gate": _B_in["w_gate"],
        "B_w_up": _B_in["w_up"],
        "B_w_down": _B_in["w_down"],
    }

def reference(A_x, A_k_cache, A_v_cache, A_wq, A_wo, B_x, B_w_gate, B_w_up, B_w_down):
    def _A_ref(x, k_cache, v_cache, wq, wo):
        B, Sq, D = x.shape
        H, Dh = 32, 192
        q = (lambda x, *d: x.permute(*d))((x @ wq).reshape(B, Sq, H, Dh), 0, 2, 1, 3)
        scores = torch.einsum("bhqd,bhkd->bhqk", q, k_cache) * (Dh ** -0.5)
        p = _softmax(scores, axis=-1)
        o = torch.einsum("bhqk,bhkd->bhqd", p, v_cache)
        return (lambda x, *d: x.permute(*d))(o, 0, 2, 1, 3).reshape(B, Sq, H * Dh) @ wo

    def _B_ref(x, w_gate, w_up, w_down):
        g = _silu(x @ w_gate)
        u = x @ w_up
        return (g * u) @ w_down

    x = A_x
    xn = _layernorm(x, axis=-1)
    s = _A_ref(xn, A_k_cache, A_v_cache, A_wq, A_wo)
    g = _silu(_B_ref(xn, B_w_gate, B_w_up, B_w_down))
    return x + s * g
```

```python
class Asm:
    def __init__(self):
        self.L = []
        self.uid = 0
    def __call__(self, s):
        for line in s.split("\n"):
            line = line.strip()
            if line: self.L.append(line)
    def label(self, stem):
        self.uid += 1
        return f"L_{stem}_{self.uid}"
    def text(self):
        return "\n".join(self.L) + "\n"
def vr(a, n=1):
    return f"v{a}" if n == 1 else f"v[{a}:{a+n-1}]"
def sr(a, n=1):
    return f"s{a}" if n == 1 else f"s[{a}:{a+n-1}]"
def f32(x):
    import struct
    return "0x%08x" % struct.unpack("<I", struct.pack("<f", x))[0]
```

```python
import sys, math
from asmlib import *
NAME = "recurrent_scan__mha_block_cached__swiglu_ffn__decode_kernel"

WS_CNT, CNT_STRIDE = 0x000000, 256
WS_QP  = 0x010000
WS_P1  = 0x100000
WS_Y   = 0x200000
WS_FFN = 0x240000
WS_DIAG = 0x300000
WS_SIZE = 0x400000
L_XP = 0
L_QB = 2560
L_A1 = 4096
L_ML = 10240
L_O2 = 10496
L_OB = 13568
L_Y2 = 14336
L_S3 = 18432
L_HP = 22528
LDS_BYTES = 22784
SPIN_MAX = 200000
C_SCALE = math.log2(math.e)/math.sqrt(192)

def gen(S=56, T=1, PACE=5, diag=False):
    A = Asm()
    A(f"; @launch grid=(256,1,1) block=(320,1,1) lds={LDS_BYTES}")
    A('.amdgcn_target "amdgcn-amd-amdhsa--gfx950"')
    A(f".text\n.globl {NAME}\n.p2align 8\n.type {NAME},@function\n{NAME}:")
    sX, sK, sV, sWQ, sWO, sWG, sWU, sWD, sOUT, sDBG, sWS = 4, 6, 8, 10, 12, 16, 18, 20, 22, 24, 26
    rK, rV, rWS, rA, rB = 28, 32, 36, 40, 44
    sH, sJ, sWAVE = 48, 49, 3
    sC = 50
    sT0, sT1, sT2, sT3 = 52, 53, 54, 55
    sTILE, sLEFT, sOFF, sDONE, sATOM, sATF = 56, 57, 58, 59, 60, 61
    sQ = 62
    sEX = 64
    sSPIN = 66
    sBB = 67
    sFL = 68
    sST = 72
    def srd(r, base, nbytes):
        A(f"s_mov_b32 s{r}, s{base}\ns_and_b32 s{r+1}, s{base+1}, 0xffff\ns_mov_b32 s{r+2}, {nbytes}\ns_mov_b32 s{r+3}, 0x20000")
    def mf(d, a, b, c): A(f"v_mfma_f32_16x16x32_bf16 v[{d}:{d+3}], v[{a}:{a+3}], v[{b}:{b+3}], {c}")
    def mfa(d, a, b): mf(d, a, b, f"v[{d}:{d+3}]")
    def stamp(i):
        if diag: A(f"s_memrealtime s[{sST+2*i}:{sST+2*i+1}]\ns_waitcnt lgkmcnt(0)")
    DPPF = "row_mask:0xf bank_mask:0xf"
    def row_allreduce(op, regs, tmp):
        for swap in ("v_permlane16_swap_b32", "v_permlane32_swap_b32"):
            for r, t in zip(regs, tmp): A(f"v_mov_b32 v{t}, v{r}")
            A("s_nop 1")
            for r, t in zip(regs, tmp): A(f"{swap} v{t}, v{r}")
            A("s_nop 1")
            for r, t in zip(regs, tmp): A(f"{op} v{r}, v{r}, v{t}")
    def wave_allreduce(op, regs, tmp):
        for ctl in ("quad_perm:[1,0,3,2]", "quad_perm:[2,3,0,1]", "row_half_mirror", "row_mirror"):
            A("s_nop 1")
            for r in regs: A(f"{op}_dpp v{r}, v{r}, v{r} {ctl} {DPPF}")
        A("s_nop 1")
        row_allreduce(op, regs, tmp)
    def mksel(sel, t0, t1, t2):
        A(f"v_bfe_u32 v{t0}, v0, 3, 1\nv_mul_u32_u24 v{t0}, 0x202, v{t0}\nv_add_u32 v{t0}, 0x100, v{t0}")
        A(f"v_or_b32 v{t1}, 0x0c0c0000, v{t0}\nv_lshlrev_b32 v{t0}, 16, v{t0}\nv_or_b32 v{t0}, 0x0c0c, v{t0}")
        A(f"v_and_b32 v{t2}, 1, v0\nv_cmp_eq_u32 vcc, 1, v{t2}\ns_nop 1\nv_cndmask_b32 v{t0}, v{t1}, v{t0}, vcc")
        A(f"v_bfe_u32 v{t2}, v0, 1, 2\nv_mov_b32 v{t1}, 0x0c0c0c0c")
        for r in range(4):
            A(f"v_cmp_eq_u32 vcc, {r}, v{t2}\ns_nop 1\nv_cndmask_b32 v{sel+r}, v{t1}, v{t0}, vcc")
    def perm4(dst, x, sel):
        for r in range(4): A(f"v_perm_b32 v{dst+r}, v{x}, v{x}, v{sel+r}")
    def sanitize(regs):
        for r in regs: A(f"v_min_u32 v{r}, 0xfffffffe, v{r}")
    def spin_begin(): A(f"s_mov_b32 s{sSPIN}, 0")
    def spin_again(label, sleep=1):
        A(f"s_add_u32 s{sSPIN}, s{sSPIN}, 1\ns_sleep {sleep}\ns_cmp_lt_u32 s{sSPIN}, {SPIN_MAX}\ns_cbranch_scc1 {label}")

    A("s_cmp_ge_u32 s2, 256\ns_cbranch_scc1 L_end")
    A("s_load_dwordx16 s[4:19], s[0:1], 0\ns_load_dwordx8 s[20:27], s[0:1], 64")
    if diag: A(f"s_memrealtime s[{sST}:{sST+1}]")
    A(f"v_lshrrev_b32 v1, 6, v0\nv_and_b32 v0, 63, v0\ns_lshr_b32 s{sH}, s2, 3\nv_readfirstlane_b32 s{sWAVE}, v1\ns_and_b32 s{sJ}, s2, 7")
    A(f"s_mov_b32 s{sC}, {f32(C_SCALE)}")
    SEL = 20
    mksel(SEL, 2, 3, 4)
    A("s_waitcnt lgkmcnt(0)")
    srd(rWS, sWS, WS_SIZE)
    A(f"s_cmp_eq_u32 s{sWAVE}, 4\ns_cbranch_scc1 L_helper")

    vKA, vKA2, vKC, vV = 2, 3, 4, 5
    qAB, qC1, qC2 = 8, 12, 16
    acc, DG, sG = 24, 36, 52
    vM, vNMC, vL, vMX, vT, vT2, X, PA = 56, 57, 58, 59, 60, 61, 62, 64
    B0, B1, B2 = 72, 120, 168
    A(f"s_lshr_b32 s{sBB}, s{sWAVE}, 1")
    A(f"s_lshl_b32 s{sT0}, s{sBB}, 5\ns_add_u32 s{sT0}, s{sT0}, s{sH}")
    A(f"s_mul_i32 s{sT1}, s{sT0}, 6291456")
    A(f"s_add_u32 s{rK}, s{sK}, s{sT1}\ns_addc_u32 s{rK+1}, s{sK+1}, 0\ns_and_b32 s{rK+1}, s{rK+1}, 0xffff\ns_mov_b32 s{rK+2}, 6291456\ns_mov_b32 s{rK+3}, 0x20000")
    A(f"s_add_u32 s{rV}, s{sV}, s{sT1}\ns_addc_u32 s{rV+1}, s{sV+1}, 0\ns_and_b32 s{rV+1}, s{rV+1}, 0xffff\ns_mov_b32 s{rV+2}, 6291456\ns_mov_b32 s{rV+3}, 0x20000")
    A(f"s_mul_i32 s{sT1}, s{sT0}, {CNT_STRIDE}\ns_add_u32 s{sQ}, s{sWS}, s{sT1}\ns_addc_u32 s{sQ+1}, s{sWS+1}, 0")
    if WS_CNT: A(f"s_add_u32 s{sQ}, s{sQ}, {WS_CNT}\ns_addc_u32 s{sQ+1}, s{sQ+1}, 0")
    A(f"v_bfe_u32 v6, v0, 2, 2\nv_lshrrev_b32 v7, 4, v0\nv_and_b32 v1, 3, v0")
    A(f"v_mul_u32_u24 v{vKA}, 384, v6\nv_lshl_add_u32 v{vKA}, v7, 6, v{vKA}\nv_lshl_add_u32 v{vKA}, v1, 4, v{vKA}")
    A(f"v_add_u32 v{vKA2}, 3072, v{vKA}")
    A(f"v_lshrrev_b32 v{vT}, 5, v0\nv_lshl_add_u32 v{vT}, v{vT}, 2, v6\nv_mul_u32_u24 v{vKC}, 384, v{vT}")
    A(f"v_and_b32 v{vT}, 1, v7\nv_lshl_add_u32 v{vKC}, v{vT}, 6, v{vKC}\nv_lshl_add_u32 v{vKC}, v1, 4, v{vKC}\nv_add_u32 v{vKC}, 256, v{vKC}")
    A(f"v_bfe_u32 v{vT}, v0, 3, 1\nv_lshl_add_u32 v{vT}, v{vT}, 2, v7\nv_mul_u32_u24 v{vV}, 384, v{vT}")
    A(f"v_and_b32 v{vT}, 7, v0\nv_lshl_add_u32 v{vV}, v{vT}, 4, v{vV}")
    A(f"s_and_b32 s{sT0}, s{sWAVE}, 1\ns_lshl_b32 s{sT1}, s{sJ}, 1\ns_add_u32 s{sT0}, s{sT0}, s{sT1}\ns_mul_i32 s{sTILE}, s{sT0}, {S}")
    A(f"s_mul_i32 s{sOFF}, s{sTILE}, 6144")
    def kloads(B):
        return [f"buffer_load_dwordx4 v[{B}:{B+3}], v{vKA}, s[{rK}:{rK+3}], s{sOFF} offen nt",
                f"buffer_load_dwordx4 v[{B+4}:{B+7}], v{vKA}, s[{rK}:{rK+3}], s{sOFF} offen offset:1536 nt",
                f"buffer_load_dwordx4 v[{B+8}:{B+11}], v{vKC}, s[{rK}:{rK+3}], s{sOFF} offen nt",
                f"buffer_load_dwordx4 v[{B+12}:{B+15}], v{vKA2}, s[{rK}:{rK+3}], s{sOFF} offen nt",
                f"buffer_load_dwordx4 v[{B+16}:{B+19}], v{vKA2}, s[{rK}:{rK+3}], s{sOFF} offen offset:1536 nt",
                f"buffer_load_dwordx4 v[{B+20}:{B+23}], v{vKC}, s[{rK}:{rK+3}], s{sOFF} offen offset:3072 nt"]
    def vloads(B):
        return [f"buffer_load_dwordx4 v[{B+24+4*(3*t+j)}:{B+27+4*(3*t+j)}], v{vV}, s[{rV}:{rV+3}], s{sOFF} offen offset:{t*3072+j*128} nt"
                for t in range(2) for j in range(3)]
    n = 0
    for bi, B in enumerate((B0, B1, B2)):
        if bi: A(f"s_add_u32 s{sOFF}, s{sOFF}, 6144")
        for ld in kloads(B) + vloads(B):
            A(ld); n += 1
            if n > PACE: A(f"s_waitcnt vmcnt({PACE})")
    A(f"s_add_u32 s{sTILE}, s{sTILE}, 2\ns_mov_b32 s{sLEFT}, {S-3}\ns_mov_b32 s{sDONE}, 0\ns_mov_b32 s{sATF}, 0")
    for i in range(12): A(f"v_mov_b32 v{acc+i}, 0")
    A(f"v_mov_b32 v{vM}, 0xff800000\nv_mov_b32 v{vNMC}, 0\nv_mov_b32 v{vL}, 0")
    A(f"s_mul_i32 s{sT0}, s{sBB}, 384\ns_add_u32 s{sT0}, s{sT0}, {L_QB}")
    A(f"v_lshlrev_b32 v{vT}, 6, v7\nv_lshl_add_u32 v{vT}, v1, 4, v{vT}\nv_add_u32 v{vT}, s{sT0}, v{vT}")
    A(f"v_and_b32 v{vT2}, 1, v7\nv_lshlrev_b32 v{vT2}, 6, v{vT2}\nv_lshl_add_u32 v{vT2}, v1, 4, v{vT2}\nv_add_u32 v{vT2}, s{sT0}, v{vT2}")
    A("s_barrier")
    A("v_cmp_gt_u32 vcc, 32, v0")
    A(f"ds_read_b128 v[{qAB}:{qAB+3}], v{vT}\nds_read_b128 v[{qC1}:{qC1+3}], v{vT2} offset:256")
    A("s_waitcnt lgkmcnt(0)")
    for i in range(4): A(f"v_cndmask_b32 v{qC2+i}, v{qC1+i}, v{acc}, vcc")
    for i in range(4): A(f"v_cndmask_b32 v{qC1+i}, v{acc}, v{qC1+i}, vcc")
    stamp(1)
    A("s_waitcnt vmcnt(0)")
    rescale_sites = []
    def body(B, refill, waits):
        K, V = B, B+24
        if waits: A("s_waitcnt vmcnt(6)")
        mf(DG, K, qAB, "0"); mf(DG+4, K+4, qAB, "0"); mf(DG+8, K+12, qAB, "0"); mf(DG+12, K+16, qAB, "0")
        mfa(DG, K+8, qC1); mfa(DG+4, K+8, qC2); mfa(DG+8, K+20, qC1); mfa(DG+12, K+20, qC2)
        if refill:
            lnew, lhave, lmore = A.label("new"), A.label("have"), A.label("more")
            A(f"s_cmp_eq_u32 s{sLEFT}, 0\ns_cbranch_scc1 {lnew}")
            A(f"s_add_u32 s{sTILE}, s{sTILE}, 1\ns_sub_u32 s{sLEFT}, s{sLEFT}, 1")
            A(f"s_cmp_eq_u32 s{sLEFT}, {T-1}\ns_cbranch_scc0 {lhave}\ns_cmp_eq_u32 s{sATF}, 0\ns_cbranch_scc0 {lhave}")
            A(f"s_mov_b32 s{sATOM}, 1\ns_atomic_add s{sATOM}, s[{sQ}:{sQ+1}], 0x0 glc\ns_mov_b32 s{sATF}, 1\ns_branch {lhave}")
            A(f"{lnew}:\ns_waitcnt lgkmcnt(0)")
            A(f"s_mul_i32 s{sTILE}, s{sATOM}, {T}\ns_add_u32 s{sTILE}, s{sTILE}, {16*S}\ns_mov_b32 s{sLEFT}, {T-1}")
            A(f"s_cmp_lt_u32 s{sTILE}, 1024\ns_cbranch_scc1 {lmore}")
            A(f"s_mov_b32 s{sDONE}, 1\ns_mov_b32 s{rK+2}, 0\ns_mov_b32 s{sTILE}, 0\ns_branch {lhave}")
            A(f"{lmore}:\ns_mov_b32 s{sATOM}, 1\ns_atomic_add s{sATOM}, s[{sQ}:{sQ+1}], 0x0 glc")
            A(f"{lhave}:\ns_mul_i32 s{sOFF}, s{sTILE}, 6144")
            for ld in kloads(B): A(ld)
        else:
            A("s_nop 4")
        for G in range(4):
            d = DG + 4*G
            A(f"v_mov_b32_dpp v{sG+G}, v{d} quad_perm:[0,0,0,0] {DPPF}")
            for i in range(1, 4): A(f"v_add_f32_dpp v{sG+G}, v{d+i}, v{sG+G} quad_perm:[{i},{i},{i},{i}] {DPPF}")
        lres, lback = A.label("rescale"), A.label("back")
        rescale_sites.append((lres, lback))
        A(f"v_max3_f32 v{vMX}, v{sG}, v{sG+1}, v{sG+2}\nv_max_f32 v{vMX}, v{vMX}, v{sG+3}")
        A(f"v_cmp_gt_f32 vcc, v{vMX}, v{vM}\ns_cbranch_vccnz {lres}\n{lback}:")
        for G in range(4): A(f"v_fma_f32 v{sG+G}, v{sG+G}, s{sC}, v{vNMC}")
        for G in range(4): A(f"v_exp_f32 v{sG+G}, v{sG+G}")
        A("s_nop 0")
        A(f"v_cvt_pk_bf16_f32 v{X}, v{sG}, v{sG+1}\nv_cvt_pk_bf16_f32 v{X+1}, v{sG+2}, v{sG+3}")
        A(f"v_add_f32 v{vT}, v{sG}, v{sG+1}\nv_add_f32 v{vT2}, v{sG+2}, v{sG+3}")
        for t in range(2): perm4(PA+4*t, X+t, SEL)
        A(f"v_add_f32 v{vT}, v{vT}, v{vT2}\nv_add_f32 v{vL}, v{vL}, v{vT}")
        if waits: A("s_waitcnt vmcnt(6)")
        else: A("s_nop 0")
        for t in range(2):
            for j in range(3): mfa(acc+4*j, PA+4*t, V+4*(3*t+j))
        if refill:
            A(f"s_cmp_eq_u32 s{sDONE}, 0\ns_cselect_b32 s{rV+2}, s{rV+2}, 0")
            for ld in vloads(B): A(ld)
    body(B1, False, False)
    lskip = A.label("nowo")
    A(f"s_cmp_ge_u32 s{sJ}, 5\ns_cbranch_scc1 {lskip}")
    srd(rA, sWO, 6144*1280)
    A(f"s_mul_i32 s{sT0}, s{sH}, {192*1280}\ns_mul_i32 s{sT1}, s{sWAVE}, {48*1280}\ns_add_u32 s{sT0}, s{sT0}, s{sT1}\ns_lshl_b32 s{sT1}, s{sJ}, 8\ns_add_u32 s{sT0}, s{sT0}, s{sT1}")
    A(f"v_mul_u32_u24 v{vT}, 1280, v7\nv_and_b32 v{vT2}, 15, v0\nv_lshl_add_u32 v{vT}, v{vT2}, 4, v{vT}")
    for r in range(12):
        A(f"buffer_load_dwordx4 v[{B1+4*r}:{B1+4*r+3}], v{vT}, s[{rA}:{rA+3}], s{sT0} offen nt")
        if r < 11: A(f"s_add_u32 s{sT0}, s{sT0}, {4*1280}")
    A(f"{lskip}:")
    body(B0, True, False)
    body(B2, False, False)
    A("L_loop:")
    body(B0, True, True)
    A(f"s_cmp_eq_u32 s{sDONE}, 0\ns_cbranch_scc1 L_loop")
    A("s_branch L_loopdone")
    for lres, lback in rescale_sites:
        A(f"{lres}:")
        row_allreduce("v_max_f32", [vMX], [vT])
        A(f"v_max_f32 v{vMX}, v{vMX}, v{vM}")
        A(f"v_sub_f32 v{vT}, v{vM}, v{vMX}\nv_mul_f32 v{vT}, s{sC}, v{vT}\nv_exp_f32 v{vT}, v{vT}\nv_mov_b32 v{vM}, v{vMX}")
        A(f"v_mul_f32 v{vNMC}, s{sC}, v{vMX}\nv_sub_f32 v{vNMC}, 0, v{vNMC}")
        for i in range(12): A(f"v_mul_f32 v{acc+i}, v{vT}, v{acc+i}")
        A(f"v_mul_f32 v{vL}, v{vT}, v{vL}\ns_branch {lback}")
    A("L_loopdone:")
    stamp(2)
    row_allreduce("v_add_f32", [vL], [vT])
    A(f"v_lshrrev_b32 v7, 4, v0\nv_lshrrev_b32 v6, 5, v0\nv_bfe_u32 v1, v0, 3, 1\nv_cmp_eq_u32 vcc, v6, v1")
    A(f"v_mul_u32_u24 v{vT}, 768, v6\nv_and_b32 v{vT2}, 7, v0\nv_lshl_add_u32 v{vT}, v{vT2}, 5, v{vT}\nv_and_b32 v{vT2}, 1, v7\nv_lshl_add_u32 v{vT}, v{vT2}, 4, v{vT}")
    A(f"s_mul_i32 s{sT0}, s{sWAVE}, 1536\ns_add_u32 s{sT0}, s{sT0}, {L_A1}\nv_add_u32 v{vT}, s{sT0}, v{vT}")
    A(f"s_waitcnt vmcnt(0)\ns_nop 4\ns_and_saveexec_b64 s[{sEX}:{sEX+1}], vcc")
    for j in range(3): A(f"ds_write_b128 v{vT}, v[{acc+4*j}:{acc+4*j+3}] offset:{256*j}")
    A(f"s_mov_b64 exec, 1\ns_lshl_b32 s{sT0}, s{sWAVE}, 3\ns_add_u32 s{sT0}, s{sT0}, {L_ML}\nv_mov_b32 v{vT}, s{sT0}")
    A(f"ds_write2_b32 v{vT}, v{vM}, v{vL} offset0:0 offset1:1")
    A(f"s_mov_b64 exec, -1\ns_waitcnt lgkmcnt(0)\ns_barrier")
    lnopub = A.label("nopub")
    A(f"s_and_b32 s{sT0}, s{sWAVE}, 1\ns_cmp_eq_u32 s{sT0}, 0\ns_cbranch_scc0 {lnopub}")
    R = B0
    A(f"s_mul_i32 s{sT0}, s{sWAVE}, 1536\ns_add_u32 s{sT0}, s{sT0}, {L_A1}\nv_min_u32 v{vT}, 47, v0\nv_lshlrev_b32 v{vT}, 4, v{vT}\nv_add_u32 v{vT}, s{sT0}, v{vT}")
    for k in range(4): A(f"ds_read_b128 v[{R+4*k}:{R+4*k+3}], v{vT} offset:{768*k}")
    A(f"s_lshl_b32 s{sT0}, s{sWAVE}, 3\ns_add_u32 s{sT0}, s{sT0}, {L_ML}\nv_mov_b32 v{vT2}, s{sT0}")
    A(f"ds_read_b128 v[{R+16}:{R+19}], v{vT2}")
    A("s_waitcnt lgkmcnt(0)")
    A(f"v_max_f32 v{R+20}, v{R+16}, v{R+18}")
    A(f"v_sub_f32 v{R+21}, v{R+16}, v{R+20}\nv_sub_f32 v{R+22}, v{R+18}, v{R+20}\nv_mul_f32 v{R+21}, s{sC}, v{R+21}\nv_mul_f32 v{R+22}, s{sC}, v{R+22}")
    A(f"v_exp_f32 v{R+21}, v{R+21}\nv_exp_f32 v{R+22}, v{R+22}")
    for i in range(4): A(f"v_add_f32 v{R+i}, v{R+i}, v{R+4+i}")
    for i in range(4): A(f"v_add_f32 v{R+8+i}, v{R+8+i}, v{R+12+i}")
    for i in range(4): A(f"v_mul_f32 v{R+i}, v{R+21}, v{R+i}")
    for i in range(4): A(f"v_fma_f32 v{R+i}, v{R+22}, v{R+8+i}, v{R+i}")
    A(f"v_mul_f32 v{R+23}, v{R+21}, v{R+17}\nv_fma_f32 v{R+23}, v{R+22}, v{R+19}, v{R+23}")
    A("v_cmp_eq_u32 vcc, 48, v0\ns_nop 1")
    A(f"v_cndmask_b32 v{R}, v{R}, v{R+20}, vcc\nv_cndmask_b32 v{R+1}, v{R+1}, v{R+23}, vcc")
    sanitize(range(R, R+4))
    A(f"s_lshl_b32 s{sT0}, s{sH}, 1\ns_add_u32 s{sT0}, s{sT0}, s{sBB}\ns_lshl_b32 s{sT0}, s{sT0}, 3\ns_add_u32 s{sT0}, s{sT0}, s{sJ}\ns_lshl_b32 s{sT0}, s{sT0}, 10\ns_add_u32 s{sT0}, s{sT0}, {WS_P1}")
    A(f"v_lshlrev_b32 v{vT}, 4, v0\nv_cmp_gt_u32 vcc, 49, v0\ns_and_saveexec_b64 s[{sEX}:{sEX+1}], vcc")
    A(f"buffer_store_dwordx4 v[{R}:{R+3}], v{vT}, s[{rWS}:{rWS+3}], s{sT0} offen sc1")
    A("s_mov_b64 exec, -1")
    A(f"{lnopub}:")
    stamp(3)
    A(f"s_cmp_ge_u32 s{sJ}, 5\ns_cbranch_scc1 L_fin_stream")
    R = B0+4
    A(f"s_lshl_b32 s{sT0}, s{sH}, 1\ns_add_u32 s{sT0}, s{sT0}, s{sBB}\ns_lshl_b32 s{sT0}, s{sT0}, 13\ns_add_u32 s{sT0}, s{sT0}, {WS_P1}")
    A(f"s_and_b32 s{sT1}, s{sWAVE}, 1\ns_lshl_b32 s{sT1}, s{sT1}, 12\ns_add_u32 s{sT1}, s{sT1}, s{sT0}")
    A(f"v_min_u32 v{vT}, 47, v0\nv_lshlrev_b32 v{vT}, 4, v{vT}")
    A(f"v_and_b32 v{vT2}, 7, v0\nv_lshlrev_b32 v{vT2}, 10, v{vT2}\nv_add_u32 v{vT2}, 768, v{vT2}")
    spin_begin()
    A("L_p2poll:")
    A(f"buffer_load_dwordx2 v[{R+16}:{R+17}], v{vT2}, s[{rWS}:{rWS+3}], s{sT0} offen sc1")
    for k in range(4): A(f"buffer_load_dwordx4 v[{R+4*k}:{R+4*k+3}], v{vT}, s[{rWS}:{rWS+3}], s{sT1} offen offset:{1024*k} sc1")
    A("s_waitcnt vmcnt(0)")
    A(f"v_max3_u32 v{vMX}, v{R+16}, v{R+17}, v{R}")
    for k in range(1, 15, 2): A(f"v_max3_u32 v{vMX}, v{vMX}, v{R+k}, v{R+k+1}")
    A(f"v_max_u32 v{vMX}, v{vMX}, v{R+15}\nv_cmp_eq_u32 vcc, -1, v{vMX}\ns_cbranch_vccz L_p2ok")
    spin_again("L_p2poll")
    A("L_p2ok:")
    A(f"v_mov_b32 v{R+18}, v{R+16}\ns_nop 1")
    for ctl in ("quad_perm:[1,0,3,2]", "quad_perm:[2,3,0,1]", "row_half_mirror"):
        A(f"v_max_f32_dpp v{R+18}, v{R+18}, v{R+18} {ctl} {DPPF}\ns_nop 1")
    A(f"v_sub_f32 v{R+16}, v{R+16}, v{R+18}\nv_mul_f32 v{R+16}, s{sC}, v{R+16}\nv_exp_f32 v{R+16}, v{R+16}\ns_nop 0\nv_mul_f32 v{R+17}, v{R+16}, v{R+17}\ns_nop 1")
    for ctl in ("quad_perm:[1,0,3,2]", "quad_perm:[2,3,0,1]", "row_half_mirror"):
        A(f"v_add_f32_dpp v{R+17}, v{R+17}, v{R+17} {ctl} {DPPF}\ns_nop 1")
    A(f"v_rcp_f32 v{R+17}, v{R+17}\ns_nop 0\nv_mul_f32 v{R+16}, v{R+16}, v{R+17}")
    A(f"s_and_b32 s{sT2}, s{sWAVE}, 1\ns_lshl_b32 s{sT2}, s{sT2}, 2\ns_mov_b32 m0, s{sT2}\ns_nop 0")
    for k in range(4):
        A(f"v_readlane_b32 s{sFL+k}, v{R+16}, m0")
        if k < 3: A("s_add_u32 m0, m0, 1\ns_nop 0")
    A("s_nop 1")
    for i in range(4): A(f"v_mul_f32 v{R+i}, s{sFL}, v{R+i}")
    for k in range(1, 4):
        for i in range(4): A(f"v_fma_f32 v{R+i}, s{sFL+k}, v{R+4*k+i}, v{R+i}")
    A(f"s_mul_i32 s{sT0}, s{sWAVE}, 768\ns_add_u32 s{sT0}, s{sT0}, {L_O2}\nv_add_u32 v{vT}, s{sT0}, v{vT}")
    A(f"v_cmp_gt_u32 vcc, 48, v0\ns_and_saveexec_b64 s[{sEX}:{sEX+1}], vcc\nds_write_b128 v{vT}, v[{R}:{R+3}]\ns_mov_b64 exec, -1")
    A("s_waitcnt lgkmcnt(0)\ns_barrier")
    A(f"s_mul_i32 s{sT0}, s{sWAVE}, 192\ns_add_u32 s{sT0}, s{sT0}, {L_O2}\nv_min_u32 v{vT}, 47, v0\nv_lshlrev_b32 v{vT2}, 2, v{vT}\nv_add_u32 v{vT2}, s{sT0}, v{vT2}")
    for k in range(4): A(f"ds_read_b32 v{R+k}, v{vT2} offset:{768*k}")
    A(f"v_and_b32 v{vT2}, 3, v{vT}\nv_mul_u32_u24 v{vT2}, 12, v{vT2}\nv_lshrrev_b32 v{vT}, 2, v{vT}\nv_add_lshl_u32 v{vT}, v{vT}, v{vT2}, 2")
    A(f"s_mul_i32 s{sT0}, s{sWAVE}, 192\ns_add_u32 s{sT0}, s{sT0}, {L_OB}\nv_add_u32 v{vT}, s{sT0}, v{vT}")
    A("s_waitcnt lgkmcnt(0)")
    A(f"v_add_f32 v{R}, v{R}, v{R+1}\nv_add_f32 v{R+2}, v{R+2}, v{R+3}\nv_cvt_pk_bf16_f32 v{R}, v{R}, v{R+2}")
    A(f"v_cmp_gt_u32 vcc, 48, v0\ns_and_saveexec_b64 s[{sEX}:{sEX+1}], vcc\nds_write_b32 v{vT}, v{R}\ns_mov_b64 exec, -1")
    A(f"v_lshrrev_b32 v7, 4, v0\nv_mul_u32_u24 v{vT}, 48, v7\nv_add_u32 v{vT}, s{sT0}, v{vT}\ns_waitcnt lgkmcnt(0)")
    for k in range(3): A(f"ds_read_b128 v[{R+4*k}:{R+4*k+3}], v{vT} offset:{16*k}")
    A("s_waitcnt lgkmcnt(0)")
    for r in range(12):
        pa = PA + 4*(r & 1)
        perm4(pa, R+r, SEL)
        A("s_nop 1")
        mf(DG, pa, B1+4*r, "0" if r == 0 else f"v[{DG}:{DG+3}]")
    A(f"s_lshl_b32 s{sT0}, s{sWAVE}, 10\ns_add_u32 s{sT0}, s{sT0}, {L_Y2}\nv_lshlrev_b32 v{vT}, 4, v0\nv_add_u32 v{vT2}, s{sT0}, v{vT}\ns_nop 5")
    A(f"ds_write_b128 v{vT2}, v[{DG}:{DG+3}]\ns_waitcnt lgkmcnt(0)\ns_barrier")
    lnoy = A.label("noy")
    A(f"s_cmp_eq_u32 s{sWAVE}, 0\ns_cbranch_scc0 {lnoy}")
    for k in range(4): A(f"ds_read_b128 v[{R+4*k}:{R+4*k+3}], v{vT} offset:{L_Y2+1024*k}")
    A(f"v_lshrrev_b32 v6, 5, v0\nv_lshlrev_b32 v6, 9, v6\nv_and_b32 v1, 15, v0\nv_lshl_add_u32 v6, v1, 5, v6\nv_bfe_u32 v1, v0, 4, 1\nv_lshl_add_u32 v6, v1, 4, v6")
    A(f"s_lshl_b32 s{sT0}, s{sJ}, 5\ns_add_u32 s{sT0}, s{sT0}, s{sH}\ns_lshl_b32 s{sT0}, s{sT0}, 10\ns_add_u32 s{sT0}, s{sT0}, {WS_Y}")
    A("s_waitcnt lgkmcnt(0)")
    for i in range(4): A(f"v_add_f32 v{R+i}, v{R+i}, v{R+4+i}\nv_add_f32 v{R+8+i}, v{R+8+i}, v{R+12+i}")
    for i in range(4): A(f"v_add_f32 v{R+i}, v{R+i}, v{R+8+i}")
    sanitize(range(R, R+4))
    A(f"buffer_store_dwordx4 v[{R}:{R+3}], v6, s[{rWS}:{rWS+3}], s{sT0} offen sc1")
    A(f"{lnoy}:")
    stamp(4)
    A(f"s_cmp_eq_u32 s{sH}, s{sJ}\ns_cbranch_scc0 L_fin_stream")
    A(f"s_lshl_b32 s{sT0}, s{sJ}, 5\ns_lshl_b32 s{sT1}, s{sWAVE}, 3\ns_add_u32 s{sT0}, s{sT0}, s{sT1}\ns_lshl_b32 s{sT0}, s{sT0}, 10\ns_add_u32 s{sT0}, s{sT0}, {WS_Y}")
    A(f"s_add_u32 s{sT1}, s{sT0}, 4096\nv_lshlrev_b32 v{vT}, 4, v0")
    spin_begin()
    A("L_p3poll:")
    for k in range(8):
        A(f"buffer_load_dwordx4 v[{R+4*k}:{R+4*k+3}], v{vT}, s[{rWS}:{rWS+3}], s{sT0 if k < 4 else sT1} offen offset:{1024*(k&3)} sc1")
    A("s_waitcnt vmcnt(0)")
    A(f"v_max3_u32 v{vMX}, v{R}, v{R+1}, v{R+2}")
    for k in range(3, 31, 2): A(f"v_max3_u32 v{vMX}, v{vMX}, v{R+k}, v{R+k+1}")
    A(f"v_max_u32 v{vMX}, v{vMX}, v{R+31}\nv_cmp_eq_u32 vcc, -1, v{vMX}\ns_cbranch_vccz L_p3ok")
    spin_again("L_p3poll")
    A("L_p3ok:")
    for k in (1, 3, 5, 7):
        for i in range(4): A(f"v_add_f32 v{R+4*(k-1)+i}, v{R+4*(k-1)+i}, v{R+4*k+i}")
    for i in range(4): A(f"v_add_f32 v{R+i}, v{R+i}, v{R+8+i}\nv_add_f32 v{R+16+i}, v{R+16+i}, v{R+24+i}")
    for i in range(4): A(f"v_add_f32 v{R+i}, v{R+i}, v{R+16+i}")
    A(f"s_lshl_b32 s{sT0}, s{sWAVE}, 10\ns_add_u32 s{sT0}, s{sT0}, {L_S3}\nv_add_u32 v{vT2}, s{sT0}, v{vT}")
    A(f"ds_write_b128 v{vT2}, v[{R}:{R+3}]\ns_waitcnt lgkmcnt(0)\ns_barrier")
    A("L_fin_stream:")
    if diag:
        stamp(5)
        A(f"s_lshl_b32 s{sT0}, s2, 3\ns_add_u32 s{sT0}, s{sT0}, s{sWAVE}\ns_lshl_b32 s{sT0}, s{sT0}, 7\ns_add_u32 s{sT0}, s{sT0}, {WS_DIAG}")
        A("s_mov_b64 exec, 1\nv_mov_b32 v1, 0")
        for i in range(6):
            A(f"v_mov_b32 v2, s{sST+2*i}\nv_mov_b32 v3, s{sST+2*i+1}\nbuffer_store_dwordx2 v[2:3], v1, s[{rWS}:{rWS+3}], s{sT0} offen offset:{8*i}\ns_nop 1")
        A(f"s_getreg_b32 s{sT1}, hwreg(HW_REG_XCC_ID)\nv_mov_b32 v2, s{sT1}\nv_mov_b32 v3, s{sTILE}\nbuffer_store_dwordx2 v[2:3], v1, s[{rWS}:{rWS+3}], s{sT0} offen offset:64")
    A("s_endpgm")

    A("L_helper:")
    XR = 24
    W = 96
    hT, hT2, hT3, hT4 = 2, 3, 4, 5
    srd(rA, sX, 2560)
    srd(rB, sWQ, 640*12288)
    A(f"v_lshlrev_b32 v{hT}, 2, v0")
    for b in range(2):
        for i in range(5): A(f"buffer_load_dword v{XR+5*b+i}, v{hT}, s[{rA}:{rA+3}], 0 offen offset:{1280*b+256*i}")
    A(f"v_lshrrev_b32 v7, 4, v0\nv_and_b32 v6, 15, v0\nv_mul_u32_u24 v8, 12288, v7\nv_lshl_add_u32 v8, v6, 4, v8")
    A(f"v_lshrrev_b32 v9, 3, v6\nv_lshl_add_u32 v9, v9, 2, v7\nv_mul_u32_u24 v9, 12288, v9\nv_and_b32 v10, 7, v6\nv_lshl_add_u32 v9, v10, 4, v9\nv_add_u32 v9, 256, v9")
    A(f"s_mul_i32 s{sT0}, s{sJ}, {80*12288}\ns_mul_i32 s{sT1}, s{sH}, 384\ns_add_u32 s{sT0}, s{sT0}, s{sT1}")
    for Rr in range(10):
        r = W + 12*Rr
        A(f"buffer_load_dwordx4 v[{r}:{r+3}], v8, s[{rB}:{rB+3}], s{sT0} offen nt")
        A(f"buffer_load_dwordx4 v[{r+8}:{r+11}], v9, s[{rB}:{rB+3}], s{sT0} offen nt")
        A(f"s_add_u32 s{sT1}, s{sT0}, {4*12288}")
        A(f"buffer_load_dwordx4 v[{r+4}:{r+7}], v8, s[{rB}:{rB+3}], s{sT1} offen nt")
        if Rr < 9: A(f"s_add_u32 s{sT0}, s{sT0}, {8*12288}")
    CL = 40
    for i in range(4): A(f"v_mov_b32 v{CL+i}, -1")
    A(f"v_lshlrev_b32 v11, 4, v0")
    nst = 0
    A(f"s_lshl_b32 s{sT0}, s{sH}, 4\ns_add_u32 s{sT0}, s{sT0}, s{sJ}\ns_lshl_b32 s{sT0}, s{sT0}, 10\ns_add_u32 s{sT0}, s{sT0}, {WS_P1}")
    A(f"buffer_store_dwordx4 v[{CL}:{CL+3}], v11, s[{rWS}:{rWS+3}], s{sT0} offen sc1")
    A(f"s_add_u32 s{sT0}, s{sT0}, 8192\nbuffer_store_dwordx4 v[{CL}:{CL+3}], v11, s[{rWS}:{rWS+3}], s{sT0} offen sc1")
    l1 = A.label("noyclr")
    A(f"s_cmp_ge_u32 s{sJ}, 5\ns_cbranch_scc1 {l1}")
    A(f"s_lshl_b32 s{sT0}, s{sJ}, 5\ns_add_u32 s{sT0}, s{sT0}, s{sH}\ns_lshl_b32 s{sT0}, s{sT0}, 10\ns_add_u32 s{sT0}, s{sT0}, {WS_Y}")
    A(f"buffer_store_dwordx4 v[{CL}:{CL+3}], v11, s[{rWS}:{rWS+3}], s{sT0} offen sc1")
    A(f"{l1}:")
    sFFN = sFL
    A(f"s_sub_u32 s{sT0}, s{sH}, 8\ns_and_b32 s{sT1}, s{sT0}, 7\ns_cmp_eq_u32 s{sT1}, s{sJ}\ns_cselect_b32 s{sFFN}, s{sT0}, -1\ns_cmp_ge_u32 s{sH}, 8\ns_cselect_b32 s{sFFN}, s{sFFN}, -1")
    l2 = A.label("nofclr")
    A(f"s_cmp_eq_u32 s{sFFN}, -1\ns_cbranch_scc1 {l2}")
    A(f"s_mul_i32 s{sT0}, s{sFFN}, 5120\ns_add_u32 s{sT0}, s{sT0}, {WS_FFN}")
    for k in range(4): A(f"buffer_store_dwordx4 v[{CL}:{CL+3}], v11, s[{rWS}:{rWS+3}], s{sT0} offen offset:{1024*k} sc1")
    A(f"s_add_u32 s{sT0}, s{sT0}, 4096\nbuffer_store_dwordx4 v[{CL}:{CL+3}], v11, s[{rWS}:{rWS+3}], s{sT0} offen sc1")
    A(f"{l2}:")
    l3 = A.label("nocnt")
    A(f"s_cmp_eq_u32 s{sJ}, 0\ns_cbranch_scc0 {l3}")
    A(f"s_mul_i32 s{sT0}, s{sH}, {CNT_STRIDE}\ns_add_u32 s{sT0}, s{sT0}, {WS_CNT}\nv_mul_u32_u24 v12, {32*CNT_STRIDE}, v0\nv_mov_b32 v13, 0")
    A(f"s_mov_b64 exec, 3\nbuffer_store_dword v13, v12, s[{rWS}:{rWS+3}], s{sT0} offen sc1\ns_mov_b64 exec, -1")
    A(f"{l3}:")
    A("s_waitcnt vmcnt(32)")
    XF = 44
    for b in range(2):
        for i in range(5):
            A(f"v_lshlrev_b32 v{XF+10*b+2*i}, 16, v{XR+5*b+i}\nv_and_b32 v{XF+10*b+2*i+1}, 0xffff0000, v{XR+5*b+i}")
    S0, S1, TM = 64, 65, 66
    for b, s in ((0, S0), (1, S1)):
        A(f"v_add_f32 v{s}, v{XF+10*b}, v{XF+10*b+1}")
        for i in range(2, 10): A(f"v_add_f32 v{s}, v{s}, v{XF+10*b+i}")
    wave_allreduce("v_add_f32", [S0, S1], [TM, TM+1])
    A(f"v_mul_f32 v{S0}, {f32(1/640)}, v{S0}\nv_mul_f32 v{S1}, {f32(1/640)}, v{S1}")
    V0, V1 = 68, 69
    for b, s, v in ((0, S0, V0), (1, S1, V1)):
        A(f"v_sub_f32 v{TM}, v{XF+10*b}, v{s}\nv_mul_f32 v{v}, v{TM}, v{TM}")
        for i in range(1, 10): A(f"v_sub_f32 v{TM}, v{XF+10*b+i}, v{s}\nv_fma_f32 v{v}, v{TM}, v{TM}, v{v}")
    wave_allreduce("v_add_f32", [V0, V1], [TM, TM+1])
    A(f"v_mul_f32 v{V0}, {f32(1/640)}, v{V0}\nv_mul_f32 v{V1}, {f32(1/640)}, v{V1}")
    def rnd2(a, b):
        A(f"v_cvt_pk_bf16_f32 v19, v{a}, v{b}\nv_lshlrev_b32 v{a}, 16, v19\nv_and_b32 v{b}, 0xffff0000, v19")
    rnd2(S0, S1); rnd2(V0, V1)
    A(f"v_add_f32 v{V0}, {f32(1e-5)}, v{V0}\nv_add_f32 v{V1}, {f32(1e-5)}, v{V1}"); rnd2(V0, V1)
    A(f"v_sqrt_f32 v{V0}, v{V0}\nv_sqrt_f32 v{V1}, v{V1}\ns_nop 0"); rnd2(V0, V1)
    A(f"v_rcp_f32 v{V0}, v{V0}\nv_rcp_f32 v{V1}, v{V1}")
    for k in range(10):
        A(f"v_sub_f32 v{XF+k}, v{XF+k}, v{S0}\nv_sub_f32 v{XF+10+k}, v{XF+10+k}, v{S1}"); rnd2(XF+k, XF+10+k)
    for k in range(10):
        A(f"v_mul_f32 v{XF+k}, v{XF+k}, v{V0}\nv_mul_f32 v{XF+10+k}, v{XF+10+k}, v{V1}")
    A(f"v_lshlrev_b32 v{hT}, 3, v0")
    for i in range(5):
        A(f"v_cvt_pk_bf16_f32 v{70+2*i}, v{XF+2*i}, v{XF+10+2*i}\nv_cvt_pk_bf16_f32 v{71+2*i}, v{XF+2*i+1}, v{XF+10+2*i+1}")
    for i in range(5): A(f"ds_write_b64 v{hT}, v[{70+2*i}:{71+2*i}] offset:{L_XP+512*i}")
    A(f"s_mul_i32 s{sT0}, s{sJ}, 320\nv_lshl_add_u32 v{hT2}, v7, 2, s{sT0}\ns_waitcnt lgkmcnt(0)")
    XP = 44
    for k in range(20): A(f"ds_read_b32 v{XP+k}, v{hT2} offset:{L_XP+16*k}")
    DA, DCa, DCb, HA = 64, 68, 72, 76
    A("s_waitcnt lgkmcnt(0)")
    A("s_waitcnt vmcnt(0)")
    for Rr in range(10):
        r = W + 12*Rr
        perm4(HA, XP+2*Rr, SEL); perm4(HA+4, XP+2*Rr+1, SEL)
        A("s_nop 1")
        c = (lambda d: "0" if Rr == 0 else f"v[{d}:{d+3}]")
        mf(DA, HA, r, c(DA)); mf(DCa, HA, r+8, c(DCa))
        mfa(DA, HA+4, r+4); mf(DCb, HA+4, r+8, c(DCb))
    A("s_nop 7")
    for i in range(4): A(f"v_add_f32_dpp v{DCa+i}, v{DCb+i}, v{DCa+i} row_ror:8 {DPPF}")
    A(f"v_lshrrev_b32 v10, 5, v0\nv_mul_u32_u24 v10, 768, v10\nv_lshl_add_u32 v10, v6, 5, v10\nv_and_b32 v11, 1, v7\nv_lshl_add_u32 v10, v11, 4, v10")
    A(f"s_lshl_b32 s{sT0}, s2, 11\ns_add_u32 s{sT0}, s{sT0}, {WS_QP}")
    A(f"buffer_store_dwordx4 v[{DA}:{DA+3}], v10, s[{rWS}:{rWS+3}], s{sT0} offen sc1")
    A(f"v_cmp_gt_u32 vcc, 8, v6\ns_and_saveexec_b64 s[{sEX}:{sEX+1}], vcc")
    A(f"buffer_store_dwordx4 v[{DCa}:{DCa+3}], v10, s[{rWS}:{rWS+3}], s{sT0} offen offset:512 sc1")
    A("s_mov_b64 exec, -1\ns_waitcnt vmcnt(0)")
    A(f"s_and_b32 s{sT0}, s{sH}, 3\ns_lshl_b32 s{sT0}, s{sT0}, 6\ns_lshr_b32 s{sT1}, s{sH}, 2\ns_lshl_b32 s{sT1}, s{sT1}, 2\ns_add_u32 s{sT0}, s{sT0}, s{sT1}")
    A(f"v_mov_b32 v12, s{sT0}\nv_mov_b32 v13, 1\ns_mov_b64 exec, 1\nglobal_atomic_add v12, v13, s[{sDBG}:{sDBG+1}] sc1\ns_mov_b64 exec, -1")
    spin_begin()
    A(f"L_qpoll:\nglobal_load_dword v13, v12, s[{sDBG}:{sDBG+1}] sc1\ns_waitcnt vmcnt(0)\nv_readfirstlane_b32 s{sT1}, v13\ns_nop 1\ns_cmp_ge_u32 s{sT1}, 8\ns_cbranch_scc1 L_qok")
    spin_again("L_qpoll", 2)
    A("L_qok:")
    A(f"v_min_u32 v10, 47, v0\nv_lshlrev_b32 v10, 4, v10\ns_lshl_b32 s{sT0}, s{sH}, 14\ns_add_u32 s{sT0}, s{sT0}, {WS_QP}")
    Q = W
    for jj in range(8):
        for b in range(2):
            A(f"buffer_load_dwordx4 v[{Q+8*jj+4*b}:{Q+8*jj+4*b+3}], v10, s[{rWS}:{rWS+3}], s{sT0} offen offset:{768*b} sc1")
        if jj < 7: A(f"s_add_u32 s{sT0}, s{sT0}, 2048")
    A("s_waitcnt vmcnt(0)")
    for step in (1, 2, 4):
        for jj in range(0, 8, 2*step):
            for i in range(8): A(f"v_add_f32 v{Q+8*jj+i}, v{Q+8*jj+i}, v{Q+8*(jj+step)+i}")
    A(f"v_cvt_pk_bf16_f32 v{Q+8}, v{Q}, v{Q+1}\nv_cvt_pk_bf16_f32 v{Q+9}, v{Q+2}, v{Q+3}\nv_cvt_pk_bf16_f32 v{Q+10}, v{Q+4}, v{Q+5}\nv_cvt_pk_bf16_f32 v{Q+11}, v{Q+6}, v{Q+7}")
    A(f"v_lshrrev_b32 v10, 1, v10\nv_cmp_gt_u32 vcc, 48, v0\ns_and_saveexec_b64 s[{sEX}:{sEX+1}], vcc")
    A(f"ds_write_b64 v10, v[{Q+8}:{Q+9}] offset:{L_QB}\nds_write_b64 v10, v[{Q+10}:{Q+11}] offset:{L_QB+384}")
    A("s_mov_b64 exec, -1\ns_waitcnt lgkmcnt(0)")
    stamp(1)
    A("s_barrier")
    A(f"s_cmp_eq_u32 s{sFFN}, -1\ns_cbranch_scc1 L_noffn")
    AD = 14
    A(f"v_mul_u32_u24 v10, 3072, v7\nv_and_b32 v11, 7, v6\nv_lshl_add_u32 v10, v11, 4, v10\ns_lshl_b32 s{sT0}, s{sFFN}, 7\nv_add_u32 v10, s{sT0}, v10")
    A(f"v_cmp_gt_u32 vcc, 8, v6\nv_mov_b32 v{AD}, s{sWU}\nv_mov_b32 v{AD+1}, s{sWU+1}\nv_mov_b32 v11, s{sWG}\nv_mov_b32 v12, s{sWG+1}")
    A(f"v_cndmask_b32 v{AD}, v{AD}, v11, vcc\nv_cndmask_b32 v{AD+1}, v{AD+1}, v12, vcc\nv_mov_b32 v11, 0")
    A(f"v_add_co_u32 v{AD}, vcc, v{AD}, v10\ns_nop 1\nv_addc_co_u32 v{AD+1}, vcc, v{AD+1}, v11, vcc")
    A(f"s_mov_b32 s{sT2}, 12288\ns_mov_b32 s{sT3}, 0")
    FB = [96, 160]
    def ffn_issue(buf):
        for k in range(16):
            A(f"global_load_dwordx4 v[{FB[buf]+4*k}:{FB[buf]+4*k+3}], v[{AD}:{AD+1}], off nt")
            A(f"v_lshl_add_u64 v[{AD}:{AD+1}], v[{AD}:{AD+1}], 0, s[{sT2}:{sT2+1}]")
    XQ = 44
    A(f"v_lshlrev_b32 v{hT2}, 2, v7")
    def ffn_proc(buf, first):
        for k in range(16): A(f"ds_read_b32 v{XQ+k}, v{hT2} offset:{L_XP+16*k}")
        A(f"v_add_u32 v{hT2}, 256, v{hT2}\ns_waitcnt lgkmcnt(0)")
        for k in range(16):
            pa = HA + 4*(k & 1)
            perm4(pa, XQ+k, SEL); A("s_nop 1")
            mf(DA, pa, FB[buf]+4*k, "0" if (first and k == 0) else f"v[{DA}:{DA+3}]")
    ffn_issue(0)
    ffn_issue(1); A("s_waitcnt vmcnt(16)"); ffn_proc(0, True)
    A(f"s_mov_b32 s{sT1}, 4\nL_ffn1:")
    ffn_issue(0); A("s_waitcnt vmcnt(16)"); ffn_proc(1, False)
    ffn_issue(1); A("s_waitcnt vmcnt(16)"); ffn_proc(0, False)
    A(f"s_sub_u32 s{sT1}, s{sT1}, 1\ns_cmp_lg_u32 s{sT1}, 0\ns_cbranch_scc1 L_ffn1")
    A("s_waitcnt vmcnt(0)"); ffn_proc(1, False)
    A("s_nop 7")
    U = 44
    for i in range(4): A(f"v_mov_b32_dpp v{U+i}, v{DA+i} row_ror:8 {DPPF}")
    rnd2(DA, DA+1); rnd2(DA+2, DA+3); rnd2(U, U+1); rnd2(U+2, U+3)
    def silu(r, t):
        A(f"v_mul_f32 v{t}, {f32(-math.log2(math.e))}, v{r}\nv_exp_f32 v{t}, v{t}\ns_nop 0\nv_add_f32 v{t}, 1.0, v{t}\nv_rcp_f32 v{t}, v{t}\ns_nop 0\nv_mul_f32 v{r}, v{r}, v{t}")
    for i in range(4): silu(DA+i, 50)
    rnd2(DA, DA+1); rnd2(DA+2, DA+3)
    for i in range(4): A(f"v_mul_f32 v{DA+i}, v{DA+i}, v{U+i}")
    A(f"v_cvt_pk_bf16_f32 v{U}, v{DA}, v{DA+1}\nv_cvt_pk_bf16_f32 v{U+2}, v{DA+2}, v{DA+3}\nv_lshrrev_b32 v{U+1}, 16, v{U}\nv_lshrrev_b32 v{U+3}, 16, v{U+2}")
    A(f"v_lshlrev_b32 v10, 5, v6\nv_and_b32 v11, 1, v7\nv_lshl_add_u32 v10, v11, 4, v10\nv_lshrrev_b32 v11, 1, v7\nv_lshl_add_u32 v10, v11, 1, v10")
    A(f"v_cmp_gt_u32 vcc, 8, v6\ns_and_saveexec_b64 s[{sEX}:{sEX+1}], vcc")
    for i in range(4): A(f"ds_write_b16 v10, v{U+i} offset:{L_HP+4*i}")
    A("s_mov_b64 exec, -1\ns_waitcnt lgkmcnt(0)")
    srd(rA, sWD, 1536*1280)
    A(f"v_mul_u32_u24 v10, 1280, v7\nv_lshl_add_u32 v10, v6, 4, v10\ns_mul_i32 s{sT0}, s{sFFN}, {64*1280}")
    A(f"v_lshlrev_b32 v{hT2}, 2, v7")
    for k in range(16): A(f"ds_read_b32 v{XQ+k}, v{hT2} offset:{L_HP+16*k}")
    DD = 64; HA2 = 84
    DB = [96, 136+0]
    DB = [96, 156]
    def dn_issue(buf):
        for rr in range(2):
            for cb in range(5):
                r = DB[buf] + 20*rr + 4*cb
                A(f"buffer_load_dwordx4 v[{r}:{r+3}], v10, s[{rA}:{rA+3}], s{sT0} offen offset:{256*cb} nt")
            A(f"s_add_u32 s{sT0}, s{sT0}, {4*1280}")
    def dn_proc(buf, R0):
        for rr in range(2):
            perm4(HA2+4*rr, XQ+R0+rr, SEL)
        A("s_nop 1")
        for rr in range(2):
            for cb in range(5):
                d = DD+4*cb
                mf(d, HA2+4*rr, DB[buf]+20*rr+4*cb, "0" if R0+rr == 0 else f"v[{d}:{d+3}]")
    dn_issue(0); A("s_waitcnt lgkmcnt(0)")
    for ch in range(8):
        if ch < 7: dn_issue((ch+1) & 1); A("s_waitcnt vmcnt(10)")
        else: A("s_waitcnt vmcnt(0)")
        dn_proc(ch & 1, 2*ch)
    A("s_nop 7")
    sanitize(range(DD, DD+20))
    A(f"v_lshrrev_b32 v10, 5, v0\nv_mul_u32_u24 v10, 2560, v10\nv_lshl_add_u32 v10, v6, 5, v10\nv_and_b32 v11, 1, v7\nv_lshl_add_u32 v10, v11, 4, v10")
    A(f"s_mul_i32 s{sT0}, s{sFFN}, 5120\ns_add_u32 s{sT0}, s{sT0}, {WS_FFN}")
    for cb in range(5): A(f"buffer_store_dwordx4 v[{DD+4*cb}:{DD+4*cb+3}], v10, s[{rWS}:{rWS+3}], s{sT0} offen offset:{512*cb} sc1")
    A("L_noffn:")
    GV, XV = 24, 28
    A(f"s_cmp_eq_u32 s{sH}, s{sJ}\ns_cselect_b32 s{sFL+1}, 1, 0\ns_cmp_lt_u32 s{sJ}, 5\ns_cselect_b32 s{sFL+1}, s{sFL+1}, 0")
    A(f"s_cmp_eq_u32 s{sFL+1}, 0\ns_cbranch_scc1 L_nofinprep")
    A(f"v_lshlrev_b32 v10, 2, v0\nv_and_b32 v11, 15, v0")
    spin_begin()
    A(f"L_allq:\nglobal_load_dword v13, v10, s[{sDBG}:{sDBG+1}] sc1\ns_waitcnt vmcnt(0)")
    A("v_cmp_gt_u32 vcc, 8, v13\nv_cmp_gt_u32 s[70:71], 8, v11\ns_nop 1\ns_and_b64 vcc, vcc, s[70:71]\ns_cbranch_vccz L_allqok")
    spin_again("L_allq", 8)
    A("L_allqok:")
    A(f"v_lshrrev_b32 v10, 5, v0\nv_mul_u32_u24 v10, 2560, v10\nv_and_b32 v11, 31, v0\nv_lshl_add_u32 v10, v11, 4, v10\ns_lshl_b32 s{sT0}, s{sJ}, 9\nv_add_u32 v10, s{sT0}, v10")
    FG = 96
    spin_begin()
    A(f"L_fpoll:\ns_mov_b32 s{sT0}, {WS_FFN}")
    for c in range(24):
        A(f"buffer_load_dwordx4 v[{FG+4*c}:{FG+4*c+3}], v10, s[{rWS}:{rWS+3}], s{sT0} offen sc1")
        if c < 23: A(f"s_add_u32 s{sT0}, s{sT0}, 5120")
    A("s_waitcnt vmcnt(0)")
    A(f"v_max3_u32 v13, v{FG}, v{FG+1}, v{FG+2}")
    for k in range(3, 95, 2): A(f"v_max3_u32 v13, v13, v{FG+k}, v{FG+k+1}")
    A(f"v_max_u32 v13, v13, v{FG+95}\nv_cmp_eq_u32 vcc, -1, v13\ns_cbranch_vccz L_fok")
    spin_again("L_fpoll", 16)
    A("L_fok:")
    for c in range(1, 24):
        for i in range(4): A(f"v_add_f32 v{FG+i}, v{FG+i}, v{FG+4*c+i}")
    for i in range(4): A(f"v_mov_b32 v{GV+i}, v{FG+i}")
    rnd2(GV, GV+1); rnd2(GV+2, GV+3)
    for i in range(4): silu(GV+i, 50)
    rnd2(GV, GV+1); rnd2(GV+2, GV+3)
    srd(rA, sX, 2560)
    A(f"v_lshrrev_b32 v10, 5, v0\nv_mul_u32_u24 v10, 1280, v10\nv_and_b32 v11, 31, v0\nv_lshl_add_u32 v10, v11, 3, v10\ns_lshl_b32 s{sT0}, s{sJ}, 8\nv_add_u32 v12, s{sT0}, v10")
    A(f"buffer_load_dwordx2 v[{XV+4}:{XV+5}], v12, s[{rA}:{rA+3}], 0 offen\ns_waitcnt vmcnt(0)")
    A(f"v_lshlrev_b32 v{XV}, 16, v{XV+4}\nv_and_b32 v{XV+1}, 0xffff0000, v{XV+4}\nv_lshlrev_b32 v{XV+2}, 16, v{XV+5}\nv_and_b32 v{XV+3}, 0xffff0000, v{XV+5}")
    A("L_nofinprep:")
    A("s_barrier")
    A(f"s_cmp_ge_u32 s{sJ}, 5\ns_cbranch_scc1 L_fin_helper")
    A("s_barrier\ns_barrier")
    A(f"s_cmp_eq_u32 s{sFL+1}, 0\ns_cbranch_scc1 L_fin_helper")
    A("s_barrier")
    A(f"v_lshlrev_b32 v10, 4, v0")
    F = 96
    for k in range(4): A(f"ds_read_b128 v[{F+4*k}:{F+4*k+3}], v10 offset:{L_S3+1024*k}")
    srd(rA, sOUT, 2560)
    A("s_waitcnt lgkmcnt(0)")
    for i in range(4): A(f"v_add_f32 v{F+i}, v{F+i}, v{F+4+i}\nv_add_f32 v{F+8+i}, v{F+8+i}, v{F+12+i}")
    for i in range(4): A(f"v_add_f32 v{F+i}, v{F+i}, v{F+8+i}")
    rnd2(F, F+1); rnd2(F+2, F+3)
    for i in range(4): A(f"v_mul_f32 v{F+i}, v{F+i}, v{GV+i}")
    rnd2(F, F+1); rnd2(F+2, F+3)
    for i in range(4): A(f"v_add_f32 v{F+i}, v{F+i}, v{XV+i}")
    A(f"v_cvt_pk_bf16_f32 v{F}, v{F}, v{F+1}\nv_cvt_pk_bf16_f32 v{F+1}, v{F+2}, v{F+3}")
    A(f"buffer_store_dwordx2 v[{F}:{F+1}], v12, s[{rA}:{rA+3}], 0 offen")
    A("L_fin_helper:")
    if diag:
        stamp(5)
        A(f"s_lshl_b32 s{sT0}, s2, 3\ns_add_u32 s{sT0}, s{sT0}, s{sWAVE}\ns_lshl_b32 s{sT0}, s{sT0}, 7\ns_add_u32 s{sT0}, s{sT0}, {WS_DIAG}")
        A("s_mov_b64 exec, 1\nv_mov_b32 v1, 0")
        for i in (0, 1, 5):
            A(f"v_mov_b32 v2, s{sST+2*i}\nv_mov_b32 v3, s{sST+2*i+1}\nbuffer_store_dwordx2 v[2:3], v1, s[{rWS}:{rWS+3}], s{sT0} offen offset:{8*i}\ns_nop 1")
    A("L_end:\ns_endpgm")
    nv = 224
    A('.section .rodata,"a"\n.p2align 6')
    A(f".amdhsa_kernel {NAME}")
    A(f".amdhsa_next_free_vgpr {nv}\n.amdhsa_next_free_sgpr 96\n.amdhsa_accum_offset {nv}")
    A(".amdhsa_group_segment_fixed_size 0\n.amdhsa_kernarg_size 96\n.amdhsa_user_sgpr_count 2")
    A(".amdhsa_user_sgpr_kernarg_segment_ptr 1\n.amdhsa_system_sgpr_workgroup_id_x 1\n.end_amdhsa_kernel")
    return A.text()

if __name__ == "__main__":
    import build
    out = sys.argv[1] if len(sys.argv) > 1 else "k.s"
    kw = {}
    for a in sys.argv[2:]:
        k, v = a.split("="); kw[k] = int(v)
    open(out, "w").write(gen(**kw))
    print(build.build(out, out[:-2] + ".co"))
```
